```python
import torch

def _softmax(x, axis=-1):
    return torch.softmax(x, dim=axis)
def _gelu(x):
    return torch.nn.functional.gelu(x, approximate="tanh")
def _silu(x):
    return torch.nn.functional.silu(x)
def _sigmoid(x):
    return torch.sigmoid(x)
def _layernorm(x, axis=-1, eps=1e-5):
    m = x.mean(dim=axis, keepdim=True)
    v = x.var(dim=axis, keepdim=True, unbiased=False)
    return (x - m) / torch.sqrt(v + eps)
def _scatter_add(tgt, idx, src, axis=0):
    return tgt.clone().index_add_(axis, idx, src)
def _segment_sum(src, seg, n):
    out = torch.zeros((n,) + src.shape[1:], dtype=src.dtype)
    return out.index_add_(0, seg, src)
def _pad(x, pw):
    flat = tuple(v for pair in reversed(pw) for v in pair)
    return torch.nn.functional.pad(x, flat)

kernel_name = 'concat_heads__sliding_local_dilated__compressed_kv_cla__prompt'

def setup_inputs():

    _w = (lambda a: (lambda t: t.to(torch.bfloat16) if t.is_floating_point() else t)(torch.as_tensor(a)))
    def _A_setup():
        B, S, D = 1, 2048, 448
        return {
            "x": _w((lambda *s: torch.randn(*s, dtype=torch.bfloat16) * 0.4)(B, S, D)),
            "wqkv": _w((lambda *s: torch.randn(*s, dtype=torch.bfloat16) * 0.4)(D, 3 * D)),
            "wo": _w((lambda *s: torch.randn(*s, dtype=torch.bfloat16) * 0.05)(D, D)),
        }
    _A_in = _A_setup()

    def _B_setup():
        B, H, Sq, Sk, D, M = 1, 16, 2048, 2048, 256, 448
        Dc = 4 * D
        return {
            "x": _w((lambda *s: torch.randn(*s, dtype=torch.bfloat16) * 0.2)(B, Sq, M)),
            "c_kv": _w((lambda *s: torch.randn(*s, dtype=torch.bfloat16) * 1.6)(B, Sk, Dc)),
            "w_q": _w((lambda *s: torch.randn(*s, dtype=torch.bfloat16) * 3.2)(M, H, D) * (M ** -0.5)),
            "w_uk": _w((lambda *s: torch.randn(*s, dtype=torch.bfloat16) * 3.2)(Dc, H, D) * (Dc ** -0.5)),
            "w_uv": _w((lambda *s: torch.randn(*s, dtype=torch.bfloat16) * 1.6)(Dc, H, D) * (Dc ** -0.5)),
            "w_o": _w((lambda *s: torch.randn(*s, dtype=torch.bfloat16) * 1.6)(H, D, M) * ((H * D) ** -0.5)),
        }
    _B_in = _B_setup()

    return {
        "A_x": _A_in["x"],
        "A_wqkv": _A_in["wqkv"],
        "A_wo": _A_in["wo"],
        "B_x": _B_in["x"],
        "B_c_kv": _B_in["c_kv"],
        "B_w_q": _B_in["w_q"],
        "B_w_uk": _B_in["w_uk"],
        "B_w_uv": _B_in["w_uv"],
        "B_w_o": _B_in["w_o"],
    }

def reference(A_x, A_wqkv, A_wo, B_x, B_c_kv, B_w_q, B_w_uk, B_w_uv, B_w_o):
    def _A_ref(x, wqkv, wo):
        B, S, D = x.shape
        H = 16; Dh = D // H
        W, dil = 8, 2
        qkv = (lambda x, *d: x.permute(*d))((x @ wqkv).reshape(B, S, 3, H, Dh), 2, 0, 3, 1, 4)
        q, k, v = qkv[0], qkv[1], qkv[2]
        scale = Dh ** -0.5
        pos = torch.arange(S)
        off = torch.arange(W) * dil
        idx = pos[:, None] - off[None, :]
        mask = idx >= 0
        idx_c = torch.where(mask, idx, 0).reshape(-1)
        kg = k[:, :, idx_c, :].reshape(B, H, S, W, Dh)
        vg = v[:, :, idx_c, :].reshape(B, H, S, W, Dh)
        logits = torch.einsum("bhsd,bhswd->bhsw", q, kg) * scale
        logits = torch.where(mask[None, None, :, :], logits, -1e9)
        attn = _softmax(logits, axis=-1)
        o = torch.einsum("bhsw,bhswd->bhsd", attn, vg)
        return (lambda x, *d: x.permute(*d))(o, 0, 2, 1, 3).reshape(B, S, D) @ wo

    def _B_ref(x, c_kv, w_q, w_uk, w_uv, w_o):
        B, Sq, M = x.shape[0], x.shape[1], x.shape[2]
        Sk = c_kv.shape[1]
        H, D = w_q.shape[1], w_q.shape[2]
        q = torch.einsum("bqm,mhd->bhqd", x, w_q)
        k = torch.einsum("bkc,chd->bhkd", c_kv, w_uk)
        v = torch.einsum("bkc,chd->bhkd", c_kv, w_uv)
        scores = torch.einsum("bhqd,bhkd->bhqk", q, k) * (D ** -0.5)
        off = Sk - Sq
        qi = torch.arange(Sq)[:, None]
        kj = torch.arange(Sk)[None, :]
        cmask = kj <= (qi + off)
        scores = torch.where(cmask[None, None], scores, -1e9)
        p = _softmax(scores, axis=-1)
        ctx = torch.einsum("bhqk,bhkd->bhqd", p, v)
        return torch.einsum("bhqd,hdm->bqm", ctx, w_o)

    a = _A_ref(A_x, A_wqkv, A_wo)
    b = _B_ref(B_x, B_c_kv, B_w_q, B_w_uk, B_w_uv, B_w_o)
    return torch.concatenate([a, b], axis=-1)
```

```python
class Asm:
    def __init__(self):
        self.lines = []
        self._lbl = 0
    def __call__(self, s):
        if isinstance(s, (list, tuple)):
            for x in s: self(x)
        else:
            self.lines.append("    " + s if not s.endswith(":") and not s.startswith(".") and not s.startswith(";") else s)
    def label(self, base="L"):
        self._lbl += 1
        return f"{base}_{self._lbl}"
    def text(self):
        return "\n".join(self.lines) + "\n"

def vr(b, n=1): return f"v{b}" if n == 1 else f"v[{b}:{b+n-1}]"
def ar(b, n=1): return f"a{b}" if n == 1 else f"a[{b}:{b+n-1}]"
def sr(b, n=1): return f"s{b}" if n == 1 else f"s[{b}:{b+n-1}]"

def mfma16(d, a, b, c=None):
    return f"v_mfma_f32_16x16x32_bf16 {d}, {a}, {b}, {d if c is None else c}"

def kernel_head(A, name):
    A(".text"); A(f".globl {name}"); A(".p2align 8"); A(f".type {name},@function"); A(f"{name}:")

def kernel_desc(A, name, vgpr=512, accum=256, sgpr=102):
    A('.section .rodata,"a"')
    A(".p2align 6")
    A(f".amdhsa_kernel {name}")
    A(f"  .amdhsa_next_free_vgpr {vgpr}")
    A(f"  .amdhsa_next_free_sgpr {sgpr}")
    A(f"  .amdhsa_accum_offset {accum}")
    A("  .amdhsa_group_segment_fixed_size 0")
    A("  .amdhsa_kernarg_size 96")
    A("  .amdhsa_user_sgpr_count 2")
    A("  .amdhsa_user_sgpr_kernarg_segment_ptr 1")
    A("  .amdhsa_system_sgpr_workgroup_id_x 1")
    A(".end_amdhsa_kernel")
    A(".text")

def weave(mf, gaps):
    out = list(gaps.get(-1, []))
    for i, m in enumerate(mf):
        out.append(m)
        out.extend(gaps.get(i, []))
    return out

KA = dict(A_x=0, A_wqkv=8, A_wo=16, B_x=24, c_kv=32, w_q=40, w_uk=48, w_uv=56, w_o=64, out=72, dbg=80, ws=88)

MB = 1 << 20
WS_Q = 0
WS_K = 16 * MB
WS_V = 32 * MB
WS_C = 48 * MB
WS_QKVA = 64 * MB
WS_OA = 72 * MB
WS_PART = 80 * MB
WS_Y = 100 * MB
WS_FLAG = 130 * MB
WS_END = 132 * MB

import os
STAMPS = bool(int(os.environ.get("STAMPS", "0")))
WS_STAMP = 200 * MB
sST = 60
vST = 127
def stamp(A, i, real=False):
    if not STAMPS or real: return
    A("s_memtime s[96:97]")
    A("s_memrealtime s[98:99]")
    A("s_waitcnt lgkmcnt(0)")
    A(f"v_writelane_b32 v{vST}, s96, {i}")
    A(f"v_writelane_b32 v{vST}, s98, {32 + i}")
def stamp_flush(A, sws, n, row0=0, vtmp=1):
    if not STAMPS: return
    A(f"s_add_u32 s92, s{sws}, {WS_STAMP}"); A(f"s_addc_u32 s93, s{sws+1}, 0")
    A(f"s_mov_b32 s94, 131072"); A("s_mov_b32 s95, 0x20000")
    A(f"s_add_u32 s96, s2, {row0}")
    A("s_lshl_b32 s96, s96, 8")
    A(f"v_lshlrev_b32 v{vtmp}, 2, v0")
    A("v_cmp_gt_u32 vcc, 64, v0")
    A("s_and_saveexec_b64 s[98:99], vcc")
    lab = A.label("STF")
    A(f"s_cbranch_execz {lab}")
    A(f"buffer_store_dword v{vST}, v{vtmp}, s[92:95], s96 offen")
    A(f"{lab}:")
    A("s_mov_b64 exec, s[98:99]")

class VM:
    def __init__(self): self.ops = []
    def add(self, tag): self.ops.append(tag)
    def need(self, *tags):
        last = -1
        for i, t in enumerate(self.ops):
            if t in tags: last = i
        n = len(self.ops) - 1 - last
        return min(n, 63)

CPF = int(os.environ.get("CPF", "1"))
def code_pf_setup(A, srd, vreg, vtmp, sWV, stmp, first_label, lanes=8):
    if not CPF: return
    l = A.label("CPC")
    A(f"s_getpc_b64 {sr(srd, 2)}")
    A(f"{l}:")
    A(f"s_sub_u32 s{srd}, s{srd}, {l}-{first_label}"); A(f"s_subb_u32 s{srd+1}, s{srd+1}, 0")
    A(f"s_mov_b32 s{srd+2}, CODE_END-{first_label}"); A(f"s_mov_b32 s{srd+3}, 0x20000")
    A(f"s_lshr_b32 s{stmp}, s2, 3"); A(f"s_lshl_b32 s{stmp}, s{stmp}, 2"); A(f"s_add_u32 s{stmp}, s{stmp}, s{sWV}")
    A(f"s_lshl_b32 s{stmp}, s{stmp}, 7")
    A(f"v_and_b32 v{vreg}, 63, v0")
    A(f"v_lshlrev_b32 v{vreg}, 14, v{vreg}")
    A(f"v_add_u32 v{vreg}, s{stmp}, v{vreg}")
def code_pf(srd, vreg, vdst):
    return [f"buffer_load_dword v{vdst}, v{vreg}, {sr(srd, 4)}, 0 offen"] if CPF else []
```

```python
import sys, importlib
from asmlib import *
HEADER = open("concat_heads__sliding_local_dilated__compressed_kv_cla__prompt.s.ref").read().split("; Override launch")[0]
def build(mods, out):
    A = Asm()
    txt = HEADER
    for m in mods:
        txt += f"; @launch {'' if os.environ.get('PLAIN') else 'kernel=' + m.NAME + ' '}grid=({m.GRID},1,1) block=({getattr(m,'BLOCK',256)},1,1) lds={m.LDS}\n"
    txt += '.amdgcn_target "amdgcn-amd-amdhsa--gfx950"\n'
    for m in mods:
        m.gen(A)
    A('.text'); A('CODE_END:')
    if int(os.environ.get("ALIGN", "1")):
        import align
        A.lines, c = align.align(A.lines, float(os.environ.get("NOPC", "4")))
        print("align residual cost", c)
    txt += A.text()
    open(out, "w").write(txt)
if __name__ == "__main__":
    names = sys.argv[2:]
    build([importlib.import_module(n) for n in names], sys.argv[1])
```

```python
class Asm:
    def __init__(self):
        self.lines = []
        self._lbl = 0
    def __call__(self, s):
        if isinstance(s, (list, tuple)):
            for x in s: self(x)
        else:
            self.lines.append("    " + s if not s.endswith(":") and not s.startswith(".") and not s.startswith(";") else s)
    def label(self, base="L"):
        self._lbl += 1
        return f"{base}_{self._lbl}"
    def text(self):
        return "\n".join(l.strip().replace(" offset:0 ", " ").replace(", ", ",") if not l.lstrip().startswith((".", ";")) else l for l in self.lines) + "\n"

def vr(b, n=1): return f"v{b}" if n == 1 else f"v[{b}:{b+n-1}]"
def ar(b, n=1): return f"a{b}" if n == 1 else f"a[{b}:{b+n-1}]"
def sr(b, n=1): return f"s{b}" if n == 1 else f"s[{b}:{b+n-1}]"

def mfma16(d, a, b, c=None):
    return f"v_mfma_f32_16x16x32_bf16 {d}, {a}, {b}, {d if c is None else c}"

def kernel_head(A, name):
    A(".text"); A(f".globl {name}"); A(".p2align 8"); A(f".type {name},@function"); A(f"{name}:")

def kernel_desc(A, name, vgpr=512, accum=256, sgpr=102):
    A('.section .rodata,"a"')
    A(".p2align 6")
    A(f".amdhsa_kernel {name}")
    A(f"  .amdhsa_next_free_vgpr {vgpr}")
    A(f"  .amdhsa_next_free_sgpr {sgpr}")
    A(f"  .amdhsa_accum_offset {accum}")
    A("  .amdhsa_group_segment_fixed_size 0")
    A("  .amdhsa_kernarg_size 96")
    A("  .amdhsa_user_sgpr_count 2")
    A("  .amdhsa_user_sgpr_kernarg_segment_ptr 1")
    A("  .amdhsa_system_sgpr_workgroup_id_x 1")
    A(".end_amdhsa_kernel")
    A(".text")

def weave(mf, gaps):
    out = list(gaps.get(-1, []))
    for i, m in enumerate(mf):
        out.append(m)
        out.extend(gaps.get(i, []))
    return out

KA = dict(A_x=0, A_wqkv=8, A_wo=16, B_x=24, c_kv=32, w_q=40, w_uk=48, w_uv=56, w_o=64, out=72, dbg=80, ws=88)

MB = 1 << 20
WS_Q = 0
WS_K = 16 * MB
WS_V = 32 * MB
WS_C = 48 * MB
WS_QKVA = 64 * MB
WS_OA = 72 * MB
WS_PART = 80 * MB
WS_Y = 100 * MB
WS_FLAG = 130 * MB
WS_END = 132 * MB

import os
STAMPS = bool(int(os.environ.get("STAMPS", "0")))
WS_STAMP = 200 * MB
sST = 60
vST = 47
def stamp(A, i, real=False):
    if not STAMPS or real: return
    A("s_memtime s[96:97]")
    A("s_memrealtime s[98:99]")
    A("s_waitcnt lgkmcnt(0)")
    A(f"v_writelane_b32 v{vST}, s96, {i}")
    A(f"v_writelane_b32 v{vST}, s98, {32 + i}")
def stamp_flush(A, sws, n, row0=0, vtmp=1):
    if not STAMPS: return
    A(f"s_add_u32 s92, s{sws}, {WS_STAMP}"); A(f"s_addc_u32 s93, s{sws+1}, 0")
    A(f"s_mov_b32 s94, 131072"); A("s_mov_b32 s95, 0x20000")
    A(f"s_add_u32 s96, s2, {row0}")
    A("s_lshl_b32 s96, s96, 8")
    A(f"v_lshlrev_b32 v{vtmp}, 2, v0")
    A("v_cmp_gt_u32 vcc, 64, v0")
    A("s_and_saveexec_b64 s[98:99], vcc")
    lab = A.label("STF")
    A(f"s_cbranch_execz {lab}")
    A(f"buffer_store_dword v{vST}, v{vtmp}, s[92:95], s96 offen")
    A(f"{lab}:")
    A("s_mov_b64 exec, s[98:99]")

class VM:
    def __init__(self): self.ops = []
    def add(self, tag): self.ops.append(tag)
    def need(self, *tags):
        last = -1
        for i, t in enumerate(self.ops):
            if t in tags: last = i
        n = len(self.ops) - 1 - last
        return min(n, 63)

CPF = int(os.environ.get("CPF", "1"))
def code_pf_setup(A, srd, vreg, vtmp, sWV, stmp, first_label, lanes=8):
    if not CPF: return
    l = A.label("CPC")
    A(f"s_getpc_b64 {sr(srd, 2)}")
    A(f"{l}:")
    A(f"s_sub_u32 s{srd}, s{srd}, {l}-{first_label}"); A(f"s_subb_u32 s{srd+1}, s{srd+1}, 0")
    A(f"s_mov_b32 s{srd+2}, CODE_END-{first_label}"); A(f"s_mov_b32 s{srd+3}, 0x20000")
    A(f"s_lshr_b32 s{stmp}, s2, 3"); A(f"s_lshl_b32 s{stmp}, s{stmp}, 2"); A(f"s_add_u32 s{stmp}, s{stmp}, s{sWV}")
    A(f"s_lshl_b32 s{stmp}, s{stmp}, 7")
    A(f"v_and_b32 v{vreg}, 63, v0")
    A(f"v_lshlrev_b32 v{vreg}, 14, v{vreg}")
    A(f"v_add_u32 v{vreg}, s{stmp}, v{vreg}")
def code_pf(srd, vreg, vdst):
    return [f"buffer_load_dword v{vdst}, v{vreg}, {sr(srd, 4)}, 0 offen"] if CPF else []

def patch_vm(lines, hist):
    ops = list(hist); out = []
    for l in lines:
        t = l.strip()
        if t.startswith("s_waitcnt vmcnt(16)"):
            d = [i for i, k in enumerate(ops) if k == 'D']
            n = len(ops) - 1 - d[-17]
            l = l.replace("vmcnt(16)", f"vmcnt({min(n, 63)})")
        elif t.startswith(("buffer_", "global_")):
            ops.append('D' if t.endswith("lds") else 'o')
        out.append(l)
    return out, ops
```

```python
class Asm:
    def __init__(self):
        self.lines = []
        self._lbl = 0
    def __call__(self, s):
        if isinstance(s, (list, tuple)):
            for x in s: self(x)
        else:
            self.lines.append("    " + s if not s.endswith(":") and not s.startswith(".") and not s.startswith(";") else s)
    def label(self, base="L"):
        self._lbl += 1
        return f"{base}_{self._lbl}"
    def text(self):
        mac = [("v_mfma_f32_16x16x32_bf16 ", "M ", 4), ("v_cvt_pk_bf16_f32 ", "CV ", 3), ("v_accvgpr_read_b32 ", "AR ", 2), ("v_accvgpr_write_b32 ", "AW ", 2)]
        hdr = []
        for full, short, n in mac:
            args = [chr(97 + i) * 2 for i in range(n)]
            hdr += [f".macro {short}" + ",".join(args), full + ",".join("\\" + a for a in args), ".endm"]
        body = []
        for l in self.lines:
            t = l.strip()
            for full, short, n in mac:
                if t.startswith(full): l = short + t[len(full):]
            body.append(l)
        self.lines = body
        return "\n".join(hdr) + "\n" + "\n".join(l.strip().replace(" offset:0 ", " ").replace(", ", ",") if not l.lstrip().startswith((".", ";")) else l for l in self.lines) + "\n"

def vr(b, n=1): return f"v{b}" if n == 1 else f"v[{b}:{b+n-1}]"
def ar(b, n=1): return f"a{b}" if n == 1 else f"a[{b}:{b+n-1}]"
def sr(b, n=1): return f"s{b}" if n == 1 else f"s[{b}:{b+n-1}]"

def mfma16(d, a, b, c=None):
    return f"v_mfma_f32_16x16x32_bf16 {d}, {a}, {b}, {d if c is None else c}"

def kernel_head(A, name):
    A(".text"); A(f".globl {name}"); A(".p2align 8"); A(f".type {name},@function"); A(f"{name}:")

def kernel_desc(A, name, vgpr=512, accum=256, sgpr=102):
    A('.section .rodata,"a"')
    A(".p2align 6")
    A(f".amdhsa_kernel {name}")
    A(f"  .amdhsa_next_free_vgpr {vgpr}")
    A(f"  .amdhsa_next_free_sgpr {sgpr}")
    A(f"  .amdhsa_accum_offset {accum}")
    A("  .amdhsa_group_segment_fixed_size 0")
    A("  .amdhsa_kernarg_size 96")
    A("  .amdhsa_user_sgpr_count 2")
    A("  .amdhsa_user_sgpr_kernarg_segment_ptr 1")
    A("  .amdhsa_system_sgpr_workgroup_id_x 1")
    A(".end_amdhsa_kernel")
    A(".text")

def weave(mf, gaps):
    out = list(gaps.get(-1, []))
    for i, m in enumerate(mf):
        out.append(m)
        out.extend(gaps.get(i, []))
    return out

KA = dict(A_x=0, A_wqkv=8, A_wo=16, B_x=24, c_kv=32, w_q=40, w_uk=48, w_uv=56, w_o=64, out=72, dbg=80, ws=88)

MB = 1 << 20
WS_Q = 0
WS_K = 16 * MB
WS_V = 32 * MB
WS_C = 48 * MB
WS_QKVA = 64 * MB
WS_OA = 72 * MB
WS_PART = 80 * MB
WS_Y = 100 * MB
WS_FLAG = 130 * MB
WS_END = 132 * MB

import os
STAMPS = bool(int(os.environ.get("STAMPS", "0")))
WS_STAMP = 200 * MB
sST = 60
vST = 47
def stamp(A, i, real=False):
    if not STAMPS or real: return
    A("s_memtime s[96:97]")
    A("s_memrealtime s[98:99]")
    A("s_waitcnt lgkmcnt(0)")
    A(f"v_writelane_b32 v{vST}, s96, {i}")
    A(f"v_writelane_b32 v{vST}, s98, {32 + i}")
def stamp_flush(A, sws, n, row0=0, vtmp=1):
    if not STAMPS: return
    A(f"s_add_u32 s92, s{sws}, {WS_STAMP}"); A(f"s_addc_u32 s93, s{sws+1}, 0")
    A(f"s_mov_b32 s94, 131072"); A("s_mov_b32 s95, 0x20000")
    A(f"s_add_u32 s96, s2, {row0}")
    A("s_lshl_b32 s96, s96, 8")
    A(f"v_lshlrev_b32 v{vtmp}, 2, v0")
    A("v_cmp_gt_u32 vcc, 64, v0")
    A("s_and_saveexec_b64 s[98:99], vcc")
    lab = A.label("STF")
    A(f"s_cbranch_execz {lab}")
    A(f"buffer_store_dword v{vST}, v{vtmp}, s[92:95], s96 offen")
    A(f"{lab}:")
    A("s_mov_b64 exec, s[98:99]")

class VM:
    def __init__(self): self.ops = []
    def add(self, tag): self.ops.append(tag)
    def need(self, *tags):
        last = -1
        for i, t in enumerate(self.ops):
            if t in tags: last = i
        n = len(self.ops) - 1 - last
        return min(n, 63)

CPF = int(os.environ.get("CPF", "1"))
def code_pf_setup(A, srd, vreg, vtmp, sWV, stmp, first_label, lanes=8):
    if not CPF: return
    l = A.label("CPC")
    A(f"s_getpc_b64 {sr(srd, 2)}")
    A(f"{l}:")
    A(f"s_sub_u32 s{srd}, s{srd}, {l}-{first_label}"); A(f"s_subb_u32 s{srd+1}, s{srd+1}, 0")
    A(f"s_mov_b32 s{srd+2}, CODE_END-{first_label}"); A(f"s_mov_b32 s{srd+3}, 0x20000")
    A(f"s_lshr_b32 s{stmp}, s2, 3"); A(f"s_lshl_b32 s{stmp}, s{stmp}, 2"); A(f"s_add_u32 s{stmp}, s{stmp}, s{sWV}")
    A(f"s_lshl_b32 s{stmp}, s{stmp}, 7")
    A(f"v_and_b32 v{vreg}, 63, v0")
    A(f"v_lshlrev_b32 v{vreg}, 14, v{vreg}")
    A(f"v_add_u32 v{vreg}, s{stmp}, v{vreg}")
def code_pf(srd, vreg, vdst):
    return [f"buffer_load_dword v{vdst}, v{vreg}, {sr(srd, 4)}, 0 offen"] if CPF else []

def patch_vm(lines, hist):
    ops = list(hist); out = []
    for l in lines:
        t = l.strip()
        if t.startswith("s_waitcnt vmcnt(16)"):
            d = [i for i, k in enumerate(ops) if k == 'D']
            n = len(ops) - 1 - d[-17]
            l = l.replace("vmcnt(16)", f"vmcnt({min(n, 63)})")
        elif t.startswith(("buffer_", "global_")):
            ops.append('D' if t.endswith("lds") else 'o')
        out.append(l)
    return out, ops

import re
class Tg(str):
    def __new__(cls, v, tag):
        o = str.__new__(cls, v); o.tag = tag; return o
def resolve_vm(lines, vm):
    res = []
    for x in lines:
        m = re.search(r"vmcnt\(@([^)]*)\)", x)
        if m: x = x.replace(m.group(0), f"vmcnt({vm.need(*m.group(1).split('|'))})")
        elif x.startswith(("buffer_", "global_")): vm.add(getattr(x, "tag", "o"))
        res.append(x)
    return res
```

```python
class Asm:
    def __init__(self):
        self.lines = []
        self._lbl = 0
    def __call__(self, s):
        if isinstance(s, (list, tuple)):
            for x in s: self(x)
        else:
            self.lines.append("    " + s if not s.endswith(":") and not s.startswith(".") and not s.startswith(";") else s)
    def label(self, base="L"):
        self._lbl += 1
        return f"{base}_{self._lbl}"
    def text(self):
        mac = [("v_mfma_f32_16x16x32_bf16 ", "M ", 4), ("v_cvt_pk_bf16_f32 ", "CV ", 3), ("v_accvgpr_read_b32 ", "AR ", 2), ("v_accvgpr_write_b32 ", "AW ", 2)]
        hdr = []
        for full, short, n in mac:
            args = [chr(97 + i) * 2 for i in range(n)]
            hdr += [f".macro {short}" + ",".join(args), full + ",".join("\\" + a for a in args), ".endm"]
        body = []
        for l in self.lines:
            t = l.strip()
            for full, short, n in mac:
                if t.startswith(full): l = short + t[len(full):]
            body.append(l)
        self.lines = body
        return "\n".join(hdr) + "\n" + "\n".join(l.strip().replace(" offset:0 ", " ").replace(", ", ",") if not l.lstrip().startswith((".", ";")) else l for l in self.lines) + "\n"

def vr(b, n=1): return f"v{b}" if n == 1 else f"v[{b}:{b+n-1}]"
def ar(b, n=1): return f"a{b}" if n == 1 else f"a[{b}:{b+n-1}]"
def sr(b, n=1): return f"s{b}" if n == 1 else f"s[{b}:{b+n-1}]"

def mfma16(d, a, b, c=None):
    return f"v_mfma_f32_16x16x32_bf16 {d}, {a}, {b}, {d if c is None else c}"

def kernel_head(A, name):
    A(".text"); A(f".globl {name}"); A(".p2align 8"); A(f".type {name},@function"); A(f"{name}:")

def kernel_desc(A, name, vgpr=512, accum=256, sgpr=102):
    A('.section .rodata,"a"')
    A(".p2align 6")
    A(f".amdhsa_kernel {name}")
    A(f"  .amdhsa_next_free_vgpr {vgpr}")
    A(f"  .amdhsa_next_free_sgpr {sgpr}")
    A(f"  .amdhsa_accum_offset {accum}")
    A("  .amdhsa_group_segment_fixed_size 0")
    A("  .amdhsa_kernarg_size 96")
    A("  .amdhsa_user_sgpr_count 2")
    A("  .amdhsa_user_sgpr_kernarg_segment_ptr 1")
    A("  .amdhsa_system_sgpr_workgroup_id_x 1")
    A(".end_amdhsa_kernel")
    A(".text")

def weave(mf, gaps):
    out = list(gaps.get(-1, []))
    for i, m in enumerate(mf):
        out.append(m)
        out.extend(gaps.get(i, []))
    return out

KA = dict(A_x=0, A_wqkv=8, A_wo=16, B_x=24, c_kv=32, w_q=40, w_uk=48, w_uv=56, w_o=64, out=72, dbg=80, ws=88)

MB = 1 << 20
WS_Q = 0
WS_K = 16 * MB
WS_V = 32 * MB
WS_C = 48 * MB
WS_QKVA = 64 * MB
WS_OA = 72 * MB
WS_PART = 80 * MB
WS_Y = 100 * MB
WS_FLAG = 130 * MB
WS_END = 132 * MB

import os
STAMPS = bool(int(os.environ.get("STAMPS", "0")))
WS_STAMP = 200 * MB
sST = 60
vST = 47
def stamp(A, i, real=False):
    if not STAMPS or real: return
    A("s_memtime s[96:97]")
    A("s_memrealtime s[98:99]")
    A("s_waitcnt lgkmcnt(0)")
    A(f"v_writelane_b32 v{vST}, s96, {i}")
    A(f"v_writelane_b32 v{vST}, s98, {32 + i}")
def stamp_flush(A, sws, n, row0=0, vtmp=1):
    if not STAMPS: return
    A(f"s_add_u32 s92, s{sws}, {WS_STAMP}"); A(f"s_addc_u32 s93, s{sws+1}, 0")
    A(f"s_mov_b32 s94, 131072"); A("s_mov_b32 s95, 0x20000")
    A(f"s_add_u32 s96, s2, {row0}")
    A("s_lshl_b32 s96, s96, 8")
    A(f"v_lshlrev_b32 v{vtmp}, 2, v0")
    A("v_cmp_gt_u32 vcc, 64, v0")
    A("s_and_saveexec_b64 s[98:99], vcc")
    lab = A.label("STF")
    A(f"s_cbranch_execz {lab}")
    A(f"buffer_store_dword v{vST}, v{vtmp}, s[92:95], s96 offen")
    A(f"{lab}:")
    A("s_mov_b64 exec, s[98:99]")

class VM:
    def __init__(self): self.ops = []
    def add(self, tag): self.ops.append(tag)
    def need(self, *tags):
        last = -1
        for i, t in enumerate(self.ops):
            if t in tags: last = i
        n = len(self.ops) - 1 - last
        return min(n, 63)

CPF = int(os.environ.get("CPF", "1"))
def code_pf_setup(A, srd, vreg, vtmp, sWV, stmp, first_label, lanes=8):
    if not CPF: return
    l = A.label("CPC")
    A(f"s_getpc_b64 {sr(srd, 2)}")
    A(f"{l}:")
    A(f"s_sub_u32 s{srd}, s{srd}, {l}-{first_label}"); A(f"s_subb_u32 s{srd+1}, s{srd+1}, 0")
    A(f"s_mov_b32 s{srd+2}, CODE_END-{first_label}"); A(f"s_mov_b32 s{srd+3}, 0x20000")
    A(f"s_lshr_b32 s{stmp}, s2, 3"); A(f"s_lshl_b32 s{stmp}, s{stmp}, 2"); A(f"s_add_u32 s{stmp}, s{stmp}, s{sWV}")
    A(f"s_lshl_b32 s{stmp}, s{stmp}, 7")
    A(f"v_and_b32 v{vreg}, 63, v0")
    A(f"v_lshlrev_b32 v{vreg}, 14, v{vreg}")
    A(f"v_add_u32 v{vreg}, s{stmp}, v{vreg}")
def code_pf(srd, vreg, vdst):
    return [f"buffer_load_dword v{vdst}, v{vreg}, {sr(srd, 4)}, 0 offen"] if CPF else []

def patch_vm(lines, hist):
    ops = list(hist); out = []
    for l in lines:
        t = l.strip()
        if t.startswith("s_waitcnt vmcnt(16)"):
            d = [i for i, k in enumerate(ops) if k == 'D']
            n = len(ops) - 1 - d[-17]
            l = l.replace("vmcnt(16)", f"vmcnt({min(n, 63)})")
        elif t.startswith(("buffer_", "global_")):
            ops.append('D' if t.endswith("lds") else 'o')
        out.append(l)
    return out, ops

import re
class Tg(str):
    def __new__(cls, v, tag):
        o = str.__new__(cls, v); o.tag = tag; return o
def resolve_vm(lines, vm):
    res = []
    for x in lines:
        m = re.search(r"vmcnt\(@([^)]*)\)", x)
        if m: x = x.replace(m.group(0), f"vmcnt({vm.need(*m.group(1).split('|'))})")
        elif x.startswith(("buffer_", "global_")): vm.add(getattr(x, "tag", "o"))
        res.append(x)
    return res

DIAG = os.environ.get("DIAG", "")
def diag_pad(A, where):
    if not DIAG.startswith(where + ":"): return
    t = int(DIAG.split(":")[1]) * 100
    l = A.label("DG")
    A(f"{l}:"); A("s_memrealtime s[98:99]"); A("s_waitcnt lgkmcnt(0)"); A("s_sub_u32 s98, s98, s96"); A(f"s_cmp_lt_u32 s98, {t}"); A(f"s_cbranch_scc1 {l}")
```

```python
import sys, importlib
from asmlib import *
HEADER = open("concat_heads__sliding_local_dilated__compressed_kv_cla__prompt.s.ref").read().split("; Override launch")[0]
def build(mods, out):
    A = Asm()
    txt = HEADER
    for m in mods:
        txt += f"; @launch {'' if os.environ.get('PLAIN') else 'kernel=' + m.NAME + ' '}grid=({m.GRID},1,1) block=({getattr(m,'BLOCK',256)},1,1) lds={m.LDS}\n"
    txt += '.amdgcn_target "amdgcn-amd-amdhsa--gfx950"\n'
    for m in mods:
        m.gen(A)
    if os.environ.get("WJIT"):
        k, pos, n = os.environ["WJIT"].split(",")
        nl = []
        for i, l in enumerate(A.lines):
            j = ["s_cselect_b32 s97, 1, 0", f"s_cmp_eq_u32 s20, {k}", f"s_cbranch_scc0 WJ{i}", f"s_sleep {n}", f"WJ{i}:", "s_cmp_lg_u32 s97, 0"]
            if l.strip() == "s_barrier":
                nl += (j + [l]) if pos == "b" else ([l] + j)
            else: nl.append(l)
        A.lines = nl
    A('.text'); A('CODE_END:')
    if int(os.environ.get("ALIGN", "1")):
        import align
        A.lines, c = align.align(A.lines, float(os.environ.get("NOPC", "4")))
        print("align residual cost", c)
    txt += A.text()
    open(out, "w").write(txt)
if __name__ == "__main__":
    names = sys.argv[2:]
    build([importlib.import_module(n) for n in names], sys.argv[1])
```
